```python
import torch

def _softmax(x, axis=-1):
    return torch.softmax(x, dim=axis)
def _gelu(x):
    return torch.nn.functional.gelu(x, approximate="tanh")
def _silu(x):
    return torch.nn.functional.silu(x)
def _sigmoid(x):
    return torch.sigmoid(x)
def _layernorm(x, axis=-1, eps=1e-5):
    m = x.mean(dim=axis, keepdim=True)
    v = x.var(dim=axis, keepdim=True, unbiased=False)
    return (x - m) / torch.sqrt(v + eps)
def _scatter_add(tgt, idx, src, axis=0):
    return tgt.clone().index_add_(axis, idx, src)
def _segment_sum(src, seg, n):
    out = torch.zeros((n,) + src.shape[1:], dtype=src.dtype)
    return out.index_add_(0, seg, src)
def _pad(x, pw):
    flat = tuple(v for pair in reversed(pw) for v in pair)
    return torch.nn.functional.pad(x, flat)

kernel_name = 'sequential_preLN__mha_block__glu_gated_reglu__prompt'

def setup_inputs():

    _w = (lambda a: (lambda t: t.to(torch.bfloat16) if t.is_floating_point() else t)(torch.as_tensor(a)))
    def _A_setup():
        B, S, D, H = 1, 2048, 1024, 32
        return {
            "x": _w((lambda *s: torch.randn(*s, dtype=torch.bfloat16) * 0.05)(B, S, D)),
            "wqkv": _w((lambda *s: torch.randn(*s, dtype=torch.bfloat16) * 0.05)(D, 3 * D)),
            "wo": _w((lambda *s: torch.randn(*s, dtype=torch.bfloat16) * 0.05)(D, D)),
        }
    _A_in = _A_setup()

    def _B_setup():
        B, S, D, F = 1, 2048, 1024, 3584
        return {
            "x": _w((lambda *s: torch.randn(*s, dtype=torch.bfloat16) * 0.05)(B, S, D)),
            "W_gate": _w((lambda *s: torch.randn(*s, dtype=torch.bfloat16) * 0.8)(D, F) * (2.0 / D) ** 0.5),
            "W_up": _w((lambda *s: torch.randn(*s, dtype=torch.bfloat16) * 0.8)(D, F) * (2.0 / D) ** 0.5),
            "W_down": _w((lambda *s: torch.randn(*s, dtype=torch.bfloat16) * 0.8)(F, D) * (1.0 / F) ** 0.5),
        }
    _B_in = _B_setup()

    return {
        "A_x": _A_in["x"],
        "A_wqkv": _A_in["wqkv"],
        "A_wo": _A_in["wo"],
        "B_x": _B_in["x"],
        "B_W_gate": _B_in["W_gate"],
        "B_W_up": _B_in["W_up"],
        "B_W_down": _B_in["W_down"],
    }

def reference(A_x, A_wqkv, A_wo, B_x, B_W_gate, B_W_up, B_W_down):
    def _A_ref(x, wqkv, wo):
        B, S, D = x.shape
        H = 32
        Dh = D // H
        qkv = (lambda x, *d: x.permute(*d))((x @ wqkv).reshape(B, S, 3, H, Dh), 2, 0, 3, 1, 4)
        q, k, v = qkv[0], qkv[1], qkv[2]
        scores = torch.einsum("bhqd,bhkd->bhqk", q, k) * (Dh ** -0.5)
        p = _softmax(scores, axis=-1)
        o = torch.einsum("bhqk,bhkd->bhqd", p, v)
        return (lambda x, *d: x.permute(*d))(o, 0, 2, 1, 3).reshape(B, S, D) @ wo

    def _B_ref(x, W_gate, W_up, W_down):
        gate = torch.einsum("bsd,df->bsf", x, W_gate)
        up = torch.einsum("bsd,df->bsf", x, W_up)
        gate = gate * (lambda x, dt: x.to(dt))(gate > 0, gate.dtype)
        h = gate * up
        return torch.einsum("bsf,fd->bsd", h, W_down)

    x = A_x
    h = x + _A_ref(_layernorm(x, axis=-1), A_wqkv, A_wo)
    h2 = h + _B_ref(_layernorm(h, axis=-1), B_W_gate, B_W_up, B_W_down)
    return h2
```

```python
import subprocess, json, sys

HEAD = '''.amdgcn_target "amdgcn-amd-amdhsa--gfx950"
.text
'''
def kernel(name, pre, body, iters, post="", vgpr=256, acc=256, lds=0):
    unr = body
    return f'''
.globl {name}
.p2align 8
.type {name},@function
{name}:
    s_load_dwordx2 s[4:5], s[0:1], 0
    s_load_dwordx2 s[6:7], s[0:1], 8
    s_waitcnt lgkmcnt(0)
    s_mov_b32 s8, s4
    s_mov_b32 s9, s5
    s_mov_b32 s10, 0x10000000
    s_mov_b32 s11, 0x00020000
    s_mov_b32 s12, s6
    s_mov_b32 s13, s7
    s_mov_b32 s14, 0x100000
    s_mov_b32 s15, 0x00020000
{pre}
    s_barrier
    s_memtime s[20:21]
    s_memrealtime s[24:25]
    s_waitcnt lgkmcnt(0)
    s_mov_b32 s16, {iters}
.p2align 6
L_{name}:
{unr}
    s_sub_u32 s16, s16, 1
    s_cmp_lg_u32 s16, 0
    s_cbranch_scc1 L_{name}
{post}
    s_waitcnt vmcnt(0) lgkmcnt(0)
    s_memtime s[22:23]
    s_memrealtime s[26:27]
    s_waitcnt lgkmcnt(0)
    s_sub_u32 s22, s22, s20
    s_sub_u32 s26, s26, s24
    v_lshrrev_b32 v1, 6, v0
    s_lshl_b32 s3, s2, 4
    v_add_u32 v1, s3, v1
    v_lshlrev_b32 v1, 3, v1
    v_mov_b32 v2, s22
    v_mov_b32 v3, s26
    v_and_b32 v0, 63, v0
    v_cmp_eq_u32 vcc, 0, v0
    s_and_saveexec_b64 s[18:19], vcc
    buffer_store_dwordx2 v[2:3], v1, s[12:15], 0 offen
    s_waitcnt vmcnt(0)
    s_endpgm
''', f'''
.p2align 6
.amdhsa_kernel {name}
  .amdhsa_next_free_vgpr {vgpr}
  .amdhsa_next_free_sgpr 100
  .amdhsa_accum_offset {acc}
  .amdhsa_group_segment_fixed_size 0
  .amdhsa_kernarg_size 16
  .amdhsa_user_sgpr_count 2
  .amdhsa_user_sgpr_kernarg_segment_ptr 1
  .amdhsa_system_sgpr_workgroup_id_x 1
.end_amdhsa_kernel
''', f'''  - .name: {name}
    .symbol: {name}.kd
    .kernarg_segment_size: 16
    .kernarg_segment_align: 8
    .group_segment_fixed_size: 0
    .private_segment_fixed_size: 0
    .wavefront_size: 64
    .sgpr_count: 100
    .vgpr_count: {vgpr}
    .max_flat_workgroup_size: 1024
    .args:
      - {{.name: kernargs, .size: 16, .offset: 0, .value_kind: by_value}}
'''

def build(kernels, runs, out):
    s = HEAD + "".join(k[0] for k in kernels) + '\n.section .rodata,"a"\n' + "".join(k[1] for k in kernels)
    s += "\n.amdgpu_metadata\n---\namdhsa.version: [1, 2]\namdhsa.kernels:\n" + "".join(k[2] for k in kernels) + "...\n.end_amdgpu_metadata\n"
    open(out + ".s_", "w").write(s)
    r = subprocess.run(["clang", "-x", "assembler", "-target", "amdgcn-amd-amdhsa", "-mcpu=gfx950", out + ".s_", "-o", out + ".co"], capture_output=True, text=True)
    if r.returncode:
        print(r.stderr[:3000]); sys.exit(1)
    json.dump(runs, open(out + ".json", "w"))
```

```python
from mb import *
ks = []; runs = []
def k(name, stride, iters, contig=False, depth=24, flush=64):
    pre = f'''
    v_and_b32 v1, 63, v0
    v_lshrrev_b32 v2, 3, v1
    s_mov_b32 s30, {128 if contig else stride}
    v_mul_lo_u32 v2, v2, s30
    v_and_b32 v3, 7, v1
    v_lshlrev_b32 v3, 4, v3
    v_add_u32 v4, v2, v3
    v_lshrrev_b32 v5, 6, v0
    s_nop 0
    v_readfirstlane_b32 s31, v5
    s_mul_i32 s32, s31, 8192
    s_and_b32 s36, s2, 7
    s_lshr_b32 s36, s36, 2
    s_lshl_b32 s36, s36, 3
    s_lshr_b32 s37, s2, 5
    s_add_u32 s36, s36, s37          ; ct
    s_mul_i32 s34, s36, {iters*8*4*1024 if contig else 128}
    s_mul_i32 s35, s31, {1024 if contig else 8*stride}
    s_add_u32 s34, s34, s35
'''
    body = ""
    for i in range(8):
        body += f'''    s_add_u32 m0, s32, {i*1024}
    s_nop 0
    buffer_load_dwordx4 v4, s[8:11], s34 offen lds
    s_add_u32 s34, s34, {4096 if contig else 32*stride}
    s_waitcnt vmcnt({depth})
'''
    ks.append(kernel(name, pre, body, iters, vgpr=64, acc=64))
    for fl in (64, 512):
        runs.append(dict(name=name, grid=256, block=256, lds=80*1024, div=8 * iters * 4, flush=fl, perwg=1, label=f"{name} flush={fl} cyc per KB per CU"))
k("w2048", 2048, 14, depth=10)
k("wcontig", 2048, 14, contig=True, depth=10)
k("w2048_d30", 2048, 14, depth=30)
k("wcontig_d30", 2048, 14, contig=True, depth=30)
k("w2176", 2176, 14, depth=10)
build(ks, runs, "mb6")
```
